```python
import torch

def _softmax(x, axis=-1):
    return torch.softmax(x, dim=axis)

def _gelu(x):
    return torch.nn.functional.gelu(x, approximate='tanh')

def _silu(x):
    return torch.nn.functional.silu(x)

def _sigmoid(x):
    return torch.sigmoid(x)

def _layernorm(x, axis=-1, eps=1e-05):
    m = x.mean(dim=axis, keepdim=True)
    v = x.var(dim=axis, keepdim=True, unbiased=False)
    return (x - m) / torch.sqrt(v + eps)

def _scatter_add(tgt, idx, src, axis=0):
    return tgt.clone().index_add_(axis, idx, src)

def _segment_sum(src, seg, n):
    out = torch.zeros((n,) + src.shape[1:], dtype=src.dtype)
    return out.index_add_(0, seg, src)

def _pad(x, pw):
    flat = tuple((v for pair in reversed(pw) for v in pair))
    return torch.nn.functional.pad(x, flat)
kernel_name = 'standalone__dilated_atrous__vision'

def setup_inputs():

    _w = lambda a: (lambda t: t.to(torch.bfloat16) if t.is_floating_point() else t)(torch.as_tensor(a))
    H = W = 512
    C = 96
    k = 3
    return {'x': _w((lambda *s: torch.randn(*s, dtype=torch.bfloat16) * 0.05)(1, H, W, C)), 'w': _w((lambda *s: torch.randn(*s, dtype=torch.bfloat16) * 0.05)(k, k, C, C) * (1.0 / (k * C ** 0.5)))}

def reference(x, w):
    B, H, W, C = x.shape
    k = 3
    rate = 2
    pad = (k - 1) * rate // 2
    xp = _pad(x, ((0, 0), (pad, pad), (pad, pad), (0, 0)))
    out = torch.zeros_like(x)
    for i in range(k):
        for j in range(k):
            tap = xp[:, i * rate:i * rate + H, j * rate:j * rate + W, :].clone()
            out = out + torch.einsum('bhwc,co->bhwo', tap, w[i, j])
    return out
```

```python
import argparse
import sys

ROWB = 512 * 96 * 2
NREC_X = 512 * ROWB
NREC_W = 9 * 96 * 96 * 2
SLOT = 13312
NSLOT = 4
W1 = NSLOT * SLOT
WSL = 55296
W2 = W1 + WSL
LDS_BYTES = W2 + WSL
BIG = 0x80000000

V_TID = 0
V_DX = [2, 3, 4, 5]
V_BB = [6, 7, 8]
V_BA = [9, 10, 11]
V_OUT = 12
V_DW = [13, 14, 15, 16]
V_TR1 = [17, 18, 19]
V_TR2 = [20, 21, 22]
V_T = [23, 24, 25, 26, 27, 28, 29, 30, 31]
NB = 6
V_B = 32
V_PK = 56
V_ACC = 68
V_W = 140
V_STAMP = 210

S_X, S_W, S_O = 4, 6, 8
SRD_X, SRD_W, SRD_O = 12, 16, 20
S_WAVE = 24
S_WK = [26, 27, 28, 29]
S_SLOT = 30
S_OLD = 31
S_XROW = 32
S_XH = 33
S_LIM = 34
S_OROW = 35
S_CNT = 36
S_T = [37, 38, 39, 40, 41, 42, 43, 44, 45]
S_WOFF = 46
S_STAMP = 48
S_WS = 50
SRD_D = 52
S_SIDX = 56


def acc(i, pb, b):
    r = V_ACC + ((i * 2 + pb) * 3 + b) * 4
    return r


def vr(r, n=4):
    return f"v[{r}:{r + n - 1}]"


def afrag(i, j, s, b):
    f = ((i * 3 + j) * 3 + s) * 3 + b
    if f < 64:
        return ('a', 4 * f)
    return ('v', V_W + 4 * (f - 64))


def regs(kind_r, lo, n):
    k, r = kind_r
    return f"{k}[{r + lo}:{r + lo + n - 1}]"


class Op:
    __slots__ = ('text', 'kind', 'tag', 'needs', 'site')

    def __init__(self, text, kind='x', tag=None, needs=()):
        self.text = text
        self.kind = kind
        self.tag = tag
        self.needs = list(needs)
        self.site = None


def mfma(d, a, bfrag, c):
    cs = '0' if c is None else vr(c)
    return f"v_mfma_f32_16x16x32_bf16 {vr(d)}, {regs(a, 0, 4)}, {vr(bfrag)}, {cs}"


class Gen:
    def __init__(self, args):
        self.args = args

    def dma_row_ops(self, q, dest):
        out = []
        nt = ' nt' if self.args.nt_in else ''
        for k in range(4):
            pre = [Op(f"s_add_u32 m0, s{dest}, s{S_WK[k]}")]
            ld = f"buffer_load_dwordx4 v{V_DX[k]}, s[{SRD_X}:{SRD_X + 3}], s{S_XROW} offen{nt} lds"
            if k < 3:
                lo = [Op(ld, 'vm', ('row', q, k))]
            else:
                lo = [Op("s_mov_b64 exec, 0xfff"), Op(ld, 'vm', ('row', q, k)), Op("s_mov_b64 exec, -1")]
            out.append((pre, lo))
        return out

    def dma_row_adv(self):
        return [Op(f"s_add_u32 s{S_XROW}, s{S_XROW}, {2 * ROWB}"),
                Op(f"s_add_u32 s{S_XH}, s{S_XH}, 2"),
                Op(f"s_cmp_lt_u32 s{S_XH}, s{S_LIM}"),
                Op(f"s_cselect_b32 s{SRD_X + 2}, {NREC_X}, 0")]

    def dma_w_ops(self, i, base):
        out = []
        for k in range(13):
            kap, m = k % 3, k // 3
            pre = [Op(f"s_add_u32 m0, s{S_WK[0]}, {base + 4096 * k}"),
                   Op(f"s_mov_b32 s{S_WOFF}, {i * WSL + 12288 * m}")]
            ld = f"buffer_load_dwordx4 v{V_DW[kap]}, s[{SRD_W}:{SRD_W + 3}], s{S_WOFF} offen lds"
            out.append((pre, [Op(ld, 'vm', ('w', i, k))]))
        pre = [Op(f"s_lshr_b32 s{S_T[0]}, s{S_WK[0]}, 1"),
               Op(f"s_add_u32 m0, s{S_T[0]}, {base + 53248}"),
               Op(f"s_mov_b32 s{S_WOFF}, {i * WSL}")]
        ld = f"buffer_load_dwordx4 v{V_DW[3]}, s[{SRD_W}:{SRD_W + 3}], s{S_WOFF} offen lds"
        out.append((pre, [Op("s_mov_b32 exec_hi, 0"), Op(ld, 'vm', ('w', i, 13)), Op("s_mov_b64 exec, -1")]))
        return out

    def tr_reads(self, i, vtr):
        out = []
        for j in range(3):
            for s in range(3):
                for b in range(3):
                    a = afrag(i, j, s, b)
                    ops = []
                    for e in range(2):
                        off = j * 18432 + s * 6144 + e * 768
                        ops.append(Op(f"ds_read_b64_tr_b16 {regs(a, 2 * e, 2)}, v{vtr[b]} offset:{off}", 'ds',
                                      ('tr', i, j, s, b, e)))
                    out.append(((j, s, b), ops))
        return out

    def bread(self, q, k):
        pb, idx = divmod(k, 9)
        j, s = divmod(idx, 3)
        buf = V_B + 4 * (k % NB)
        off = pb * 3072 + s * 64
        return Op(f"ds_read_b128 {vr(buf)}, v{V_BA[j]} offset:{off}", 'ds', ('b', q, k))

    def epilogue(self, q, pb):
        st = self.args.store_mod
        groups = []
        for b in range(3):
            a = acc(2, pb, b)
            pk = V_PK + 6 * pb + 2 * b
            groups.append([Op(f"v_cvt_pk_bf16_f32 v{pk}, v{a}, v{a + 1}")])
            groups.append([Op(f"v_cvt_pk_bf16_f32 v{pk + 1}, v{a + 2}, v{a + 3}")])
            groups.append([Op(f"buffer_store_dwordx2 v[{pk}:{pk + 1}], v{V_OUT}, s[{SRD_O}:{SRD_O + 3}], s{S_OROW} offen "
                              f"offset:{pb * 3072 + 32 * b}{st}", 'vm', ('st', q, pb, b))])
        return groups

    def slot_adv(self):
        return [Op(f"s_mov_b32 s{S_OLD}, s{S_SLOT}"),
                Op(f"s_add_u32 s{S_SLOT}, s{S_SLOT}, {SLOT}"),
                Op(f"s_cmp_eq_u32 s{S_SLOT}, {NSLOT * SLOT}"),
                Op(f"s_cselect_b32 s{S_SLOT}, 0, s{S_SLOT}")]

    def stamp_ops(self):
        if not self.args.stamps:
            return [], []
        collect = [Op(f"s_mov_b32 m0, s{S_SIDX}"), Op("s_nop 0"),
                   Op(f"v_writelane_b32 v{V_STAMP}, s{S_STAMP}, m0"),
                   Op(f"s_add_u32 s{S_SIDX}, s{S_SIDX}, 1")]
        issue = [Op(f"s_memtime s[{S_STAMP}:{S_STAMP + 1}]")]
        return issue, collect

    def row(self, q, iset, epi_prev, epi_cur, has_next, dma_next, pf, extra=None, first_needs=None,
            bar_needs=(), pre_issued=2, next_pre=2, label=None):
        a = self.args
        g = 3 * len(iset)
        n = 18 * g
        back = []
        for k in range(18):
            pb, idx = divmod(k, 9)
            j, s = divmod(idx, 3)
            buf = V_B + 4 * (k % NB)
            first = True
            order = list(iset)
            for i in order:
                for b in range(3):
                    d = acc(i, pb, b)
                    if idx == 0:
                        c = None if i == 0 else acc(i - 1, pb, b)
                    else:
                        c = d
                    needs = []
                    if first:
                        needs.append(('b', q, k))
                        first = False
                    if first_needs is not None and pb == 0:
                        needs += first_needs(i, j, s, b)
                    back.append(Op(mfma(d, afrag(i, j, s, b), buf, c), 'mfma', None, needs))
        fill = {}

        def add(pos, ops):
            fill.setdefault(pos, []).extend(ops)

        last_k_before_bar = 18 - next_pre
        for k in range(pre_issued, 18):
            src = max(k - pf, 0)
            src = min(src, last_k_before_bar - 1) if has_next else src
            pos = src * g + 1 if src * g + 1 < n else n
            if k - pf < 0:
                pos = 0
            add(pos, [self.bread(q, k)])
        step = max(1, g // 3)

        def place_epi(groups, k0):
            pos = k0 * g + min(2, g - 1)
            for grp in groups:
                add(pos, grp)
                pos += step if g < 9 else 2
        if epi_prev:
            place_epi(self.epilogue(q - 1, 1), 1 if g == 9 else 3)
        if epi_cur:
            mid = 8 * g + g // 2
            add(mid, [Op(f"s_add_u32 s{S_OROW}, s{S_OROW}, {2 * ROWB}"),
                      Op(f"s_mov_b32 s{SRD_O + 2}, {NREC_X}")])
            place_epi(self.epilogue(q, 0), 10 if g == 9 else 12)
        if has_next:
            kb = last_k_before_bar
            pb0 = kb * g
            add(pb0 - g, self.slot_adv())
            if dma_next:
                add(pb0 - g + 1 if g > 1 else pb0 - g, self.dma_row_adv())
            needs = [('row', q + 1, k) for k in range(4)] + [('b', q, 17)] + list(bar_needs)
            issue, collect = self.stamp_ops()
            add(pb0, [Op("s_barrier", 'x', None, needs + ['LGKM0'])] + collect + issue)
            add(pb0 + 1, [Op(f"v_add_u32 v{V_BA[0]}, s{S_SLOT}, v{V_BB[0]}")])
            add(pb0 + 2, [Op(f"v_add_u32 v{V_BA[1]}, s{S_SLOT}, v{V_BB[1]}")])
            add(pb0 + 2, [])
            for kk in range(next_pre):
                pos = pb0 + 2 + kk * g
                if kk == 0:
                    pos = pb0 + 2
                add(min(pos, n), [self.bread(q + 1, kk)])
            add(min(pb0 + 3, n), [Op(f"v_add_u32 v{V_BA[2]}, s{S_SLOT}, v{V_BB[2]}")])
            if dma_next:
                d = self.dma_row_ops(q + NSLOT, S_OLD)
                span = n - pb0
                stride = max(1, (span - 4) // 4)
                p0 = pb0 + (3 if span >= 12 else 1)
                for t, (pre, lo) in enumerate(d):
                    p = p0 + t * stride
                    add(p, pre)
                    add(p + 1, lo)
        if extra:
            for pos, ops in extra.items():
                add(pos, ops)
        ops = []
        if label:
            ops.append(Op(label + ':', 'label'))
        for p in range(n + 1):
            ops.extend(fill.get(p, []))
            if p < n:
                ops.append(back[p])
        assert all(p <= n for p in fill), (q, max(fill), n)
        return ops

    def setup(self):
        o = []
        e = lambda t, *r, **k: o.append(Op(t, *r, **k))
        T = V_T
        S = S_T
        e("s_cmp_ge_u32 s2, 256")
        e("s_cbranch_scc1 L_end")
        e(f"s_load_dwordx4 s[{S_X}:{S_X + 3}], s[0:1], 0")
        e(f"s_load_dwordx2 s[{S_O}:{S_O + 1}], s[0:1], 16")
        if self.args.stamps:
            e(f"s_load_dwordx2 s[{S_WS}:{S_WS + 1}], s[0:1], 32")
            e(f"s_memtime s[{S_STAMP}:{S_STAMP + 1}]")
            e(f"s_mov_b32 s{S_SIDX}, 0")
            e(f"v_mov_b32 v{V_STAMP}, 0")
        e(f"v_lshrrev_b32 v{T[0]}, 6, v0")
        e(f"s_and_b32 s{S[0]}, s2, 7")
        e(f"v_readfirstlane_b32 s{S_WAVE}, v{T[0]}")
        e(f"s_lshr_b32 s{S[1]}, s2, 3")
        e(f"s_and_b32 s{S[1]}, s{S[1]}, 1")
        e(f"s_lshr_b32 s{S[2]}, s2, 4")
        e(f"s_lshl_b32 s{S[2]}, s{S[2]}, 5")
        e(f"s_add_u32 s{S[2]}, s{S[2]}, s{S[1]}")
        e(f"s_mul_i32 s{S[3]}, s{S[0]}, 12288")
        e(f"s_sub_u32 s{S[4]}, s{S[3]}, 384")
        for k in range(3):
            if k == 0:
                L = V_TID
            else:
                L = T[1]
                e(f"v_add_u32 v{L}, {256 * k}, v0")
            e(f"v_mul_u32_u24 v{T[2]}, 43691, v{L}")
            e(f"v_lshlrev_b32 v{T[3]}, 4, v{L}")
            e(f"v_lshrrev_b32 v{T[2]}, 19, v{T[2]}")
            e(f"v_and_b32 v{T[4]}, 4, v{T[2]}")
            e(f"v_and_b32 v{T[5]}, 8, v{T[2]}")
            e(f"v_lshlrev_b32 v{T[4]}, 3, v{T[4]}")
            e(f"v_lshlrev_b32 v{T[5]}, 2, v{T[5]}")
            e(f"v_xor_b32 v{T[4]}, v{T[4]}, v{T[3]}")
            e(f"v_xor_b32 v{V_DW[k]}, v{T[5]}, v{T[3]}")
            e(f"v_add_u32 v{V_DX[k]}, s{S[4]}, v{T[4]}")
        e(f"s_cmp_eq_u32 s{S[0]}, 0")
        e(f"s_cselect_b32 s{S[5]}, 24, 0")
        e(f"v_mov_b32 v{T[6]}, {BIG:#x}")
        e(f"v_cmp_gt_u32 vcc, s{S[5]}, v0")
        e(f"v_and_b32 v{T[7]}, 63, v0")
        e(f"s_lshl_b32 s{S_WK[0]}, s{S_WAVE}, 10")
        e(f"v_cndmask_b32 v{V_DX[0]}, v{V_DX[0]}, v{T[6]}, vcc")
        e(f"s_add_u32 s{S_WK[1]}, s{S_WK[0]}, 4096")
        e(f"s_add_u32 s{S_WK[2]}, s{S_WK[0]}, 8192")
        e(f"s_mul_i32 s{S[6]}, s{S_WAVE}, 192")
        e(f"s_add_u32 s{S_WK[3]}, s{S[6]}, 12288")
        e(f"s_add_u32 s{S[7]}, s{S[4]}, s{S_WK[3]}")
        e(f"s_lshl_b32 s{S[8]}, s{S[0]}, 2")
        e(f"s_add_u32 s{S[8]}, s{S[8]}, s{S_WAVE}")
        e(f"s_cmp_ge_u32 s{S[8]}, 30")
        e(f"s_cselect_b32 s{S[7]}, {BIG:#x}, s{S[7]}")
        e(f"v_lshlrev_b32 v{T[0]}, 4, v{T[7]}")
        e(f"v_add_u32 v{V_DX[3]}, s{S[7]}, v{T[0]}")
        e(f"s_sub_u32 s{S_XH}, s{S[2]}, 2")
        e(f"s_mul_i32 s{S_XROW}, s{S_XH}, {ROWB}")
        e(f"s_add_u32 s{S_LIM}, s{S[2]}, 33")
        e(f"s_min_u32 s{S_LIM}, s{S_LIM}, 512")
        e(f"s_waitcnt lgkmcnt(0)")
        if self.args.stamps:
            e(f"v_writelane_b32 v{V_STAMP}, s{S_STAMP}, 0")
            e(f"s_mov_b32 s{S_SIDX}, 1")
        e(f"s_mov_b32 s{SRD_X}, s{S_X}")
        e(f"s_and_b32 s{SRD_X + 1}, s{S_X + 1}, 0xffff")
        e(f"s_cmp_lt_u32 s{S_XH}, s{S_LIM}")
        e(f"s_cselect_b32 s{SRD_X + 2}, {NREC_X}, 0")
        e(f"s_mov_b32 s{SRD_X + 3}, 0x20000")
        e(f"s_mov_b32 s{SRD_W}, s{S_W}")
        e(f"s_and_b32 s{SRD_W + 1}, s{S_W + 1}, 0xffff")
        e(f"s_mov_b32 s{SRD_W + 2}, {NREC_W}")
        e(f"s_mov_b32 s{SRD_W + 3}, 0x20000")
        e(f"s_mov_b32 s{S_SLOT}, 0")
        for pre, lo in self.dma_row_ops(-1, S_SLOT):
            o.extend(pre)
            e("s_nop 0")
            o.extend(lo)
        e(f"s_lshl_b32 s{S[5]}, s{S_WAVE}, 5")
        e(f"s_add_u32 s{S[5]}, s{S[5]}, 3328")
        e(f"v_add_u32 v{T[1]}, s{S[5]}, v{T[7]}")
        e(f"v_mul_u32_u24 v{T[2]}, 43691, v{T[1]}")
        e(f"v_lshlrev_b32 v{T[3]}, 4, v{T[1]}")
        e(f"v_lshrrev_b32 v{T[2]}, 19, v{T[2]}")
        e(f"v_and_b32 v{T[5]}, 8, v{T[2]}")
        e(f"v_lshlrev_b32 v{T[5]}, 2, v{T[5]}")
        e(f"v_xor_b32 v{V_DW[3]}, v{T[5]}, v{T[3]}")
        for pre, lo in self.dma_w_ops(0, W1):
            o.extend(pre)
            o.extend(lo)
        e(f"v_and_b32 v{T[0]}, 15, v{T[7]}")
        e(f"v_lshrrev_b32 v{T[1]}, 4, v{T[7]}")
        e(f"s_lshr_b32 s{S[5]}, s{S_WAVE}, 1")
        e(f"s_and_b32 s{S[6]}, s{S_WAVE}, 1")
        e(f"s_lshl_b32 s{S[5]}, s{S[5]}, 5")
        e(f"s_mul_i32 s{S[6]}, s{S[6]}, 96")
        e(f"v_lshlrev_b32 v{T[2]}, 4, v{T[1]}")
        for j in range(3):
            e(f"v_add_u32 v{T[3]}, s{S[5]}, v{T[0]}")
            if j:
                e(f"v_add_u32 v{T[3]}, {2 * j}, v{T[3]}")
            e(f"v_and_b32 v{T[4]}, 4, v{T[3]}")
            e(f"v_mul_u32_u24 v{T[5]}, 192, v{T[3]}")
            e(f"v_lshlrev_b32 v{T[4]}, 3, v{T[4]}")
            e(f"v_xor_b32 v{T[4]}, v{T[4]}, v{T[2]}")
            e(f"v_add_u32 v{V_BB[j]}, v{T[5]}, v{T[4]}")
            e(f"v_mov_b32 v{V_BA[j]}, v{V_BB[j]}")
        e(f"v_add_u32 v{T[3]}, s{S[5]}, v{T[0]}")
        e(f"v_mul_u32_u24 v{T[3]}, 192, v{T[3]}")
        e(f"v_lshlrev_b32 v{T[4]}, 3, v{T[1]}")
        e(f"s_add_u32 s{S[7]}, s{S[3]}, s{S[6]}")
        e(f"v_add3_u32 v{V_OUT}, v{T[3]}, v{T[4]}, s{S[7]}")
        e(f"v_lshrrev_b32 v{T[3]}, 2, v{T[0]}")
        e(f"v_lshl_add_u32 v{T[3]}, v{T[1]}, 3, v{T[3]}")
        e(f"v_mul_u32_u24 v{T[3]}, 192, v{T[3]}")
        e(f"v_and_b32 v{T[4]}, 3, v{T[0]}")
        e(f"v_lshlrev_b32 v{T[4]}, 3, v{T[4]}")
        e(f"v_and_b32 v{T[5]}, 1, v{T[1]}")
        e(f"v_lshlrev_b32 v{T[5]}, 5, v{T[5]}")
        e(f"v_add_u32 v{T[4]}, s{S[6]}, v{T[4]}")
        for b in range(3):
            e(f"v_add_u32 v{T[6]}, {32 * b}, v{T[4]}")
            e(f"v_xor_b32 v{T[6]}, v{T[6]}, v{T[5]}")
            e(f"v_add_u32 v{T[6]}, v{T[6]}, v{T[3]}")
            e(f"v_add_u32 v{V_TR1[b]}, {W1}, v{T[6]}")
            e(f"v_add_u32 v{V_TR2[b]}, {W2}, v{T[6]}")
        e(f"s_mov_b32 s{SRD_O}, s{S_O}")
        e(f"s_and_b32 s{SRD_O + 1}, s{S_O + 1}, 0xffff")
        e(f"s_mov_b32 s{SRD_O + 2}, 0")
        e(f"s_mov_b32 s{SRD_O + 3}, 0x20000")
        e(f"s_sub_u32 s{S_OROW}, s{S[2]}, 2")
        e(f"s_mul_i32 s{S_OROW}, s{S_OROW}, {ROWB}")
        def row_burst(q, slot):
            o.extend(self.dma_row_adv())
            e(f"s_mov_b32 s{S_OLD}, {slot * SLOT}")
            for pre, lo in self.dma_row_ops(q, S_OLD):
                o.extend(pre)
                e("s_nop 0")
                o.extend(lo)
        row_burst(0, 1)
        for pre, lo in self.dma_w_ops(1, W2):
            o.extend(pre)
            o.extend(lo)
        row_burst(1, 2)
        row_burst(2, 3)
        return o

    def build(self):
        a = self.args
        segs = []
        setup = self.setup()
        needs = [('row', -1, k) for k in range(4)] + [('w', 0, k) for k in range(14)] + \
                [('row', 0, k) for k in range(4)] + [('w', 1, k) for k in range(14)]
        issue, collect = self.stamp_ops()
        setup.append(Op("s_barrier", 'x', None, needs))
        setup += issue
        tr0 = self.tr_reads(0, V_TR1)
        tr1 = self.tr_reads(1, V_TR2)
        tr2 = self.tr_reads(2, V_TR1)
        pre = []
        pre.append(self.bread(-1, 0))
        for key, ops in tr0[:3]:
            pre += ops
        pre.append(self.bread(-1, 1))
        for key, ops in tr0[3:6]:
            pre += ops
        setup += pre
        extra = {}
        pos = 0
        for key, ops in tr0[6:]:
            extra.setdefault(pos, []).extend(ops)
            pos += 1
        pos = 27
        for key, ops in tr1:
            extra.setdefault(pos, []).extend(ops)
            pos += 1
            if pos >= 47:
                break
        n_tr1_done = pos - 27
        fn = lambda i, j, s, b: [('tr', i, j, s, b, 0), ('tr', i, j, s, b, 1)]
        rowm1 = self.row(-1, (0,), False, False, True, True, 3, extra=extra, first_needs=fn,
                         bar_needs=[('tr', 0, 2, 2, 2, 1)], next_pre=2)
        extra = {}
        pos = 0
        for key, ops in tr1[n_tr1_done:]:
            extra.setdefault(pos, []).extend(ops)
            pos += 1
        d = self.dma_w_ops(2, W1)
        pos = 1
        for pre_, lo in d:
            extra.setdefault(pos, []).extend(pre_)
            extra.setdefault(pos + 1, []).extend(lo)
            pos += 3
        pbar = 66
        extra.setdefault(pbar, []).append(Op("s_barrier", 'x', None, [('w', 2, k) for k in range(14)]))
        pos = pbar
        for key, ops in tr2:
            extra.setdefault(pos, []).extend(ops)
            pos += 1
        row0 = self.row(0, (1, 0), False, False, True, True, 2, extra=extra, first_needs=fn,
                        bar_needs=[('tr', 2, 2, 2, 2, 1)], next_pre=2)
        row0.append(Op(f"s_mov_b32 s{S_CNT}, 14"))

        def body(q):
            ops = self.row(q, (2, 1, 0), True, True, True, True, 2, label="L_loop")
            ops.append(Op(f"s_sub_u32 s{S_CNT}, s{S_CNT}, 1"))
            ops.append(Op(f"s_cmp_lg_u32 s{S_CNT}, 0"))
            ops.append(Op("s_cbranch_scc1 L_loop"))
            return ops
        row15 = self.row(15, (2, 1), True, True, True, False, 2)
        row16 = self.row(16, (2,), True, True, False, False, 3)
        tail = [Op("s_nop 7"), Op("s_nop 1")]
        for grp in self.epilogue(16, 1):
            tail += grp
        if a.stamps:
            tail.append(Op("s_waitcnt lgkmcnt(0)"))
            issue, collect = self.stamp_ops()
            tail += collect
            tail.append(Op("s_waitcnt vmcnt(0)"))
            tail += issue
            tail.append(Op("s_waitcnt lgkmcnt(0)"))
            tail += collect
            e = lambda t: tail.append(Op(t))
            e(f"s_mov_b32 s{SRD_D}, s{S_WS}")
            e(f"s_and_b32 s{SRD_D + 1}, s{S_WS + 1}, 0xffff")
            e(f"s_mov_b32 s{SRD_D + 2}, {256 * 4 * 256}")
            e(f"s_mov_b32 s{SRD_D + 3}, 0x20000")
            e(f"s_lshl_b32 s{S_T[0]}, s2, 10")
            e(f"v_lshlrev_b32 v{V_T[0]}, 2, v0")
            e(f"buffer_store_dword v{V_STAMP}, v{V_T[0]}, s[{SRD_D}:{SRD_D + 3}], s{S_T[0]} offen")
        tail.append(Op("L_end:", 'label'))
        tail.append(Op("s_endpgm"))

        fixed1 = setup + rowm1 + row0
        bodies = [body(q) for q in range(1, 15)]
        for bq in bodies[1:]:
            assert [x.text for x in bq] == [x.text for x in bodies[0]]
        fixed2 = row15 + row16 + tail
        seq = [('f1', i, op) for i, op in enumerate(fixed1)]
        for bq in bodies:
            seq += [('body', i, op) for i, op in enumerate(bq)]
        seq += [('f2', i, op) for i, op in enumerate(fixed2)]

        waits = {}
        dsq, vmq = {}, {}
        nds = nvm = 0
        for seg, i, op in seq:
            for t in op.needs:
                w = waits.setdefault((seg, i), [None, None])
                if t == 'LGKM0':
                    w[0] = 0
                elif t in dsq:
                    nn = min(nds - 1 - dsq[t], 14)
                    w[0] = nn if w[0] is None else min(w[0], nn)
                elif t in vmq:
                    nn = min(nvm - 1 - vmq[t], 62)
                    w[1] = nn if w[1] is None else min(w[1], nn)
                else:
                    raise RuntimeError(f"unknown tag {t} at {seg} {i} {op.text}")
            if op.kind == 'ds':
                dsq[op.tag] = nds
                nds += 1
            elif op.kind == 'vm':
                vmq[op.tag] = nvm
                nvm += 1
        useful = set()
        nds = nvm = 0
        ds_done = vm_done = 0
        for seg, i, op in seq:
            w = waits.get((seg, i))
            if w:
                if w[0] is not None and nds - w[0] > ds_done:
                    ds_done = nds - w[0]
                    useful.add((seg, i, 0))
                if w[1] is not None and nvm - w[1] > vm_done:
                    vm_done = nvm - w[1]
                    useful.add((seg, i, 1))
                for t in op.needs:
                    if t == 'LGKM0':
                        assert ds_done == nds
                    elif t in dsq:
                        assert dsq[t] < ds_done, (seg, i, t)
                    else:
                        assert vmq[t] < vm_done, (seg, i, t)
            if op.kind == 'ds':
                nds += 1
            elif op.kind == 'vm':
                nvm += 1

        def emit(seg, ops):
            lines = []
            for i, op in enumerate(ops):
                w = waits.get((seg, i))
                if w:
                    parts = []
                    if w[1] is not None and (seg, i, 1) in useful:
                        parts.append(f"vmcnt({w[1]})")
                    if w[0] is not None and ((seg, i, 0) in useful or 'LGKM0' in op.needs):
                        parts.append(f"lgkmcnt({w[0]})")
                    if parts:
                        lines.append("    s_waitcnt " + " ".join(parts))
                if op.kind == 'label':
                    lines.append(op.text)
                else:
                    lines.append("    " + op.text)
            return lines
        lines = emit('f1', fixed1)
        lines.append("    .p2align 3" if False else "")
        lines += emit('body', bodies[0]) + emit('f2', fixed2)
        return lines


HEADER = """; Kernarg layout for this problem (40 bytes, ptrs only, base s[0:1]):
; @launch grid=(256,1,1) block=(256,1,1) lds=163840
.amdgcn_target "amdgcn-amd-amdhsa--gfx950"
.text
.globl standalone__dilated_atrous__vision_kernel
.p2align 8
.type standalone__dilated_atrous__vision_kernel,@function
standalone__dilated_atrous__vision_kernel:
"""

FOOTER = """.section .rodata,"a"
.p2align 6
.amdhsa_kernel standalone__dilated_atrous__vision_kernel
  .amdhsa_next_free_vgpr 512
  .amdhsa_next_free_sgpr 64
  .amdhsa_accum_offset 256
  .amdhsa_group_segment_fixed_size 0
  .amdhsa_kernarg_size 40
  .amdhsa_user_sgpr_count 2
  .amdhsa_user_sgpr_kernarg_segment_ptr 1
  .amdhsa_system_sgpr_workgroup_id_x 1
.end_amdhsa_kernel
"""


def main():
    ap = argparse.ArgumentParser()
    ap.add_argument('-o', default='-')
    ap.add_argument('--stamps', action='store_true')
    ap.add_argument('--nt-in', action='store_true', dest='nt_in')
    ap.add_argument('--store-mod', default='', dest='store_mod')
    args = ap.parse_args()
    if args.store_mod:
        args.store_mod = ' ' + args.store_mod.replace('+', ' ')
    g = Gen(args)
    lines = g.build()
    txt = HEADER + "\n".join(l for l in lines if l) + "\n" + FOOTER
    if args.o == '-':
        sys.stdout.write(txt)
    else:
        open(args.o, 'w').write(txt)


if __name__ == '__main__':
    main()
```

```python
import argparse
import sys

ROWB = 512 * 96 * 2
NREC_X = 512 * ROWB
NREC_W = 9 * 96 * 96 * 2
SLOT = 13312
NSLOT = 4
W1 = NSLOT * SLOT
WSL = 55296
W2 = W1 + WSL
LDS_BYTES = W2 + WSL
BIG = 0x80000000

V_TID = 0
V_DX = [2, 3, 4, 5]
V_BB = [6, 7, 8]
V_BA = [9, 10, 11]
V_OUT = 12
V_DW = [13, 14, 15, 16]
V_TR1 = [17, 18, 19]
V_TR2 = [20, 21, 22]
V_T = [23, 24, 25, 26, 27, 28, 29, 30, 31]
NB = 6
V_B = 32
V_PK = 56
V_ACC = 68
V_W = 140
V_STAMP = 210

S_X, S_W, S_O = 4, 6, 8
SRD_X, SRD_W, SRD_O = 12, 16, 20
S_WAVE = 24
S_WK = [26, 27, 28, 29]
S_SLOT = 30
S_OLD = 31
S_XROW = 32
S_XH = 33
S_LIM = 34
S_OROW = 35
S_CNT = 36
S_T = [37, 38, 39, 40, 41, 42, 43, 44, 45]
S_WOFF = 46
S_STAMP = 48
S_WS = 50
SRD_D = 52
S_SIDX = 56
S_RT = 58


def acc(i, pb, b):
    r = V_ACC + ((i * 2 + pb) * 3 + b) * 4
    return r


def vr(r, n=4):
    return f"v[{r}:{r + n - 1}]"


def afrag(i, j, s, b):
    f = ((i * 3 + j) * 3 + s) * 3 + b
    if f < 64:
        return ('a', 4 * f)
    return ('v', V_W + 4 * (f - 64))


def regs(kind_r, lo, n):
    k, r = kind_r
    return f"{k}[{r + lo}:{r + lo + n - 1}]"


class Op:
    __slots__ = ('text', 'kind', 'tag', 'needs', 'site')

    def __init__(self, text, kind='x', tag=None, needs=()):
        self.text = text
        self.kind = kind
        self.tag = tag
        self.needs = list(needs)
        self.site = None


def mfma(d, a, bfrag, c):
    cs = '0' if c is None else vr(c)
    return f"v_mfma_f32_16x16x32_bf16 {vr(d)}, {regs(a, 0, 4)}, {vr(bfrag)}, {cs}"


class Gen:
    def __init__(self, args):
        self.args = args

    def dma_row_ops(self, q, dest):
        out = []
        nt = ' nt' if self.args.nt_in else ''
        for k in range(4):
            pre = [Op(f"s_add_u32 m0, s{dest}, s{S_WK[k]}")]
            ld = f"buffer_load_dwordx4 v{V_DX[k]}, s[{SRD_X}:{SRD_X + 3}], s{S_XROW} offen{nt} lds"
            if k < 3:
                lo = [Op(ld, 'vm', ('row', q, k))]
            else:
                lo = [Op("s_mov_b64 exec, 0xfff"), Op(ld, 'vm', ('row', q, k)), Op("s_mov_b64 exec, -1")]
            out.append((pre, lo))
        return out

    def dma_row_adv(self):
        return [Op(f"s_add_u32 s{S_XROW}, s{S_XROW}, {2 * ROWB}"),
                Op(f"s_add_u32 s{S_XH}, s{S_XH}, 2"),
                Op(f"s_cmp_lt_u32 s{S_XH}, s{S_LIM}"),
                Op(f"s_cselect_b32 s{SRD_X + 2}, {NREC_X}, 0")]

    def dma_w_ops(self, i, base):
        out = []
        for k in range(13):
            kap, m = k % 3, k // 3
            pre = [Op(f"s_add_u32 m0, s{S_WK[0]}, {base + 4096 * k}"),
                   Op(f"s_mov_b32 s{S_WOFF}, {i * WSL + 12288 * m}")]
            ld = f"buffer_load_dwordx4 v{V_DW[kap]}, s[{SRD_W}:{SRD_W + 3}], s{S_WOFF} offen lds"
            out.append((pre, [Op(ld, 'vm', ('w', i, k))]))
        pre = [Op(f"s_lshr_b32 s{S_T[0]}, s{S_WK[0]}, 1"),
               Op(f"s_add_u32 m0, s{S_T[0]}, {base + 53248}"),
               Op(f"s_mov_b32 s{S_WOFF}, {i * WSL}")]
        ld = f"buffer_load_dwordx4 v{V_DW[3]}, s[{SRD_W}:{SRD_W + 3}], s{S_WOFF} offen lds"
        out.append((pre, [Op("s_mov_b32 exec_hi, 0"), Op(ld, 'vm', ('w', i, 13)), Op("s_mov_b64 exec, -1")]))
        return out

    def tr_reads(self, i, vtr):
        out = []
        for j in range(3):
            for s in range(3):
                for b in range(3):
                    a = afrag(i, j, s, b)
                    ops = []
                    for e in range(2):
                        off = j * 18432 + s * 6144 + e * 768
                        ops.append(Op(f"ds_read_b64_tr_b16 {regs(a, 2 * e, 2)}, v{vtr[b]} offset:{off}", 'ds',
                                      ('tr', i, j, s, b, e)))
                    out.append(((j, s, b), ops))
        return out

    def bread(self, q, k):
        pb, idx = divmod(k, 9)
        j, s = divmod(idx, 3)
        buf = V_B + 4 * (k % NB)
        off = pb * 3072 + s * 64
        return Op(f"ds_read_b128 {vr(buf)}, v{V_BA[j]} offset:{off}", 'ds', ('b', q, k))

    def epilogue(self, q, pb):
        st = self.args.store_mod
        groups = []
        for b in range(3):
            a = acc(2, pb, b)
            pk = V_PK + 6 * pb + 2 * b
            groups.append([Op(f"v_cvt_pk_bf16_f32 v{pk}, v{a}, v{a + 1}")])
            groups.append([Op(f"v_cvt_pk_bf16_f32 v{pk + 1}, v{a + 2}, v{a + 3}")])
            groups.append([Op(f"buffer_store_dwordx2 v[{pk}:{pk + 1}], v{V_OUT}, s[{SRD_O}:{SRD_O + 3}], s{S_OROW} offen "
                              f"offset:{pb * 3072 + 32 * b}{st}", 'vm', ('st', q, pb, b))])
        return groups

    def slot_adv(self):
        return [Op(f"s_mov_b32 s{S_OLD}, s{S_SLOT}"),
                Op(f"s_add_u32 s{S_SLOT}, s{S_SLOT}, {SLOT}"),
                Op(f"s_cmp_eq_u32 s{S_SLOT}, {NSLOT * SLOT}"),
                Op(f"s_cselect_b32 s{S_SLOT}, 0, s{S_SLOT}")]

    def stamp_ops(self):
        if not self.args.stamps:
            return [], []
        collect = [Op(f"s_mov_b32 m0, s{S_SIDX}"), Op("s_nop 0"),
                   Op(f"v_writelane_b32 v{V_STAMP}, s{S_STAMP}, m0"),
                   Op(f"s_add_u32 s{S_SIDX}, s{S_SIDX}, 1")]
        issue = [Op(f"s_memtime s[{S_STAMP}:{S_STAMP + 1}]")]
        return issue, collect

    def row(self, q, iset, epi_prev, epi_cur, has_next, dma_next, pf, extra=None, first_needs=None,
            bar_needs=(), pre_issued=2, next_pre=2, label=None):
        a = self.args
        g = 3 * len(iset)
        n = 18 * g
        back = []
        for k in range(18):
            pb, idx = divmod(k, 9)
            j, s = divmod(idx, 3)
            buf = V_B + 4 * (k % NB)
            first = True
            order = list(iset)
            for i in order:
                for b in range(3):
                    d = acc(i, pb, b)
                    if idx == 0:
                        c = None if i == 0 else acc(i - 1, pb, b)
                    else:
                        c = d
                    needs = []
                    if first:
                        needs.append(('b', q, k))
                        first = False
                    if first_needs is not None and pb == 0:
                        needs += first_needs(i, j, s, b)
                    back.append(Op(mfma(d, afrag(i, j, s, b), buf, c), 'mfma', None, needs))
        fill = {}

        def add(pos, ops):
            fill.setdefault(pos, []).extend(ops)

        last_k_before_bar = 18 - next_pre
        for k in range(pre_issued, 18):
            src = max(k - pf, 0)
            src = min(src, last_k_before_bar - 1) if has_next else src
            pos = src * g + 1 if src * g + 1 < n else n
            if k - pf < 0:
                pos = 0
            add(pos, [self.bread(q, k)])
        step = max(1, g // 3)

        def place_epi(groups, k0):
            pos = k0 * g + min(2, g - 1)
            for grp in groups:
                add(pos, grp)
                pos += step if g < 9 else 2
        if epi_prev:
            place_epi(self.epilogue(q - 1, 1), 1 if g == 9 else 3)
        if epi_cur:
            mid = 8 * g + g // 2
            add(mid, [Op(f"s_add_u32 s{S_OROW}, s{S_OROW}, {2 * ROWB}"),
                      Op(f"s_mov_b32 s{SRD_O + 2}, {NREC_X}")])
            place_epi(self.epilogue(q, 0), 10 if g == 9 else 12)
        if has_next:
            kb = last_k_before_bar
            pb0 = kb * g
            add(pb0 - g, self.slot_adv())
            if dma_next:
                add(pb0 - g + 1 if g > 1 else pb0 - g, self.dma_row_adv())
            needs = [('row', q + 1, k) for k in range(4)] + [('b', q, 17)] + list(bar_needs)
            issue, collect = self.stamp_ops()
            add(pb0, [Op("s_barrier", 'x', None, needs + ['LGKM0'])] + collect + issue)
            add(pb0 + 1, [Op(f"v_add_u32 v{V_BA[0]}, s{S_SLOT}, v{V_BB[0]}")])
            add(pb0 + 2, [Op(f"v_add_u32 v{V_BA[1]}, s{S_SLOT}, v{V_BB[1]}")])
            add(pb0 + 2, [])
            for kk in range(next_pre):
                pos = pb0 + 2 + kk * g
                if kk == 0:
                    pos = pb0 + 2
                add(min(pos, n), [self.bread(q + 1, kk)])
            add(min(pb0 + 3, n), [Op(f"v_add_u32 v{V_BA[2]}, s{S_SLOT}, v{V_BB[2]}")])
            if dma_next:
                d = self.dma_row_ops(q + NSLOT, S_OLD)
                span = n - pb0
                stride = max(1, (span - 4) // 4)
                p0 = pb0 + (3 if span >= 12 else 1)
                for t, (pre, lo) in enumerate(d):
                    p = p0 + t * stride
                    add(p, pre)
                    add(p + 1, lo)
        if extra:
            for pos, ops in extra.items():
                add(pos, ops)
        ops = []
        if label:
            ops.append(Op(label + ':', 'label'))
        for p in range(n + 1):
            ops.extend(fill.get(p, []))
            if p < n:
                ops.append(back[p])
        assert all(p <= n for p in fill), (q, max(fill), n)
        return ops

    def setup(self):
        o = []
        e = lambda t, *r, **k: o.append(Op(t, *r, **k))
        T = V_T
        S = S_T
        e("s_cmp_ge_u32 s2, 256")
        e("s_cbranch_scc1 L_end")
        e(f"s_load_dwordx4 s[{S_X}:{S_X + 3}], s[0:1], 0")
        e(f"s_load_dwordx2 s[{S_O}:{S_O + 1}], s[0:1], 16")
        if self.args.stamps:
            e(f"s_load_dwordx2 s[{S_WS}:{S_WS + 1}], s[0:1], 32")
            e(f"s_memtime s[{S_STAMP}:{S_STAMP + 1}]")
            e(f"s_memrealtime s[{S_RT}:{S_RT + 1}]")
            e(f"s_mov_b32 s{S_SIDX}, 0")
            e(f"v_mov_b32 v{V_STAMP}, 0")
        e(f"v_lshrrev_b32 v{T[0]}, 6, v0")
        e(f"s_and_b32 s{S[0]}, s2, 7")
        e(f"v_readfirstlane_b32 s{S_WAVE}, v{T[0]}")
        e(f"s_lshr_b32 s{S[1]}, s2, 3")
        e(f"s_and_b32 s{S[1]}, s{S[1]}, 1")
        e(f"s_lshr_b32 s{S[2]}, s2, 4")
        e(f"s_lshl_b32 s{S[2]}, s{S[2]}, 5")
        e(f"s_add_u32 s{S[2]}, s{S[2]}, s{S[1]}")
        e(f"s_mul_i32 s{S[3]}, s{S[0]}, 12288")
        e(f"s_sub_u32 s{S[4]}, s{S[3]}, 384")
        for k in range(3):
            if k == 0:
                L = V_TID
            else:
                L = T[1]
                e(f"v_add_u32 v{L}, {256 * k}, v0")
            e(f"v_mul_u32_u24 v{T[2]}, 43691, v{L}")
            e(f"v_lshlrev_b32 v{T[3]}, 4, v{L}")
            e(f"v_lshrrev_b32 v{T[2]}, 19, v{T[2]}")
            e(f"v_and_b32 v{T[4]}, 4, v{T[2]}")
            e(f"v_and_b32 v{T[5]}, 8, v{T[2]}")
            e(f"v_lshlrev_b32 v{T[4]}, 3, v{T[4]}")
            e(f"v_lshlrev_b32 v{T[5]}, 2, v{T[5]}")
            e(f"v_xor_b32 v{T[4]}, v{T[4]}, v{T[3]}")
            e(f"v_xor_b32 v{V_DW[k]}, v{T[5]}, v{T[3]}")
            e(f"v_add_u32 v{V_DX[k]}, s{S[4]}, v{T[4]}")
        e(f"s_cmp_eq_u32 s{S[0]}, 0")
        e(f"s_cselect_b32 s{S[5]}, 24, 0")
        e(f"v_mov_b32 v{T[6]}, {BIG:#x}")
        e(f"v_cmp_gt_u32 vcc, s{S[5]}, v0")
        e(f"v_and_b32 v{T[7]}, 63, v0")
        e(f"s_lshl_b32 s{S_WK[0]}, s{S_WAVE}, 10")
        e(f"v_cndmask_b32 v{V_DX[0]}, v{V_DX[0]}, v{T[6]}, vcc")
        e(f"s_add_u32 s{S_WK[1]}, s{S_WK[0]}, 4096")
        e(f"s_add_u32 s{S_WK[2]}, s{S_WK[0]}, 8192")
        e(f"s_mul_i32 s{S[6]}, s{S_WAVE}, 192")
        e(f"s_add_u32 s{S_WK[3]}, s{S[6]}, 12288")
        e(f"s_add_u32 s{S[7]}, s{S[4]}, s{S_WK[3]}")
        e(f"s_lshl_b32 s{S[8]}, s{S[0]}, 2")
        e(f"s_add_u32 s{S[8]}, s{S[8]}, s{S_WAVE}")
        e(f"s_cmp_ge_u32 s{S[8]}, 30")
        e(f"s_cselect_b32 s{S[7]}, {BIG:#x}, s{S[7]}")
        e(f"v_lshlrev_b32 v{T[0]}, 4, v{T[7]}")
        e(f"v_add_u32 v{V_DX[3]}, s{S[7]}, v{T[0]}")
        e(f"s_sub_u32 s{S_XH}, s{S[2]}, 2")
        e(f"s_mul_i32 s{S_XROW}, s{S_XH}, {ROWB}")
        e(f"s_add_u32 s{S_LIM}, s{S[2]}, 33")
        e(f"s_min_u32 s{S_LIM}, s{S_LIM}, 512")
        e(f"s_waitcnt lgkmcnt(0)")
        if self.args.stamps:
            e(f"v_writelane_b32 v{V_STAMP}, s{S_STAMP}, 0")
            e(f"v_writelane_b32 v{V_STAMP}, s{S_RT}, 62")
            e(f"s_mov_b32 s{S_SIDX}, 1")
        e(f"s_mov_b32 s{SRD_X}, s{S_X}")
        e(f"s_and_b32 s{SRD_X + 1}, s{S_X + 1}, 0xffff")
        e(f"s_cmp_lt_u32 s{S_XH}, s{S_LIM}")
        e(f"s_cselect_b32 s{SRD_X + 2}, {NREC_X}, 0")
        e(f"s_mov_b32 s{SRD_X + 3}, 0x20000")
        e(f"s_mov_b32 s{SRD_W}, s{S_W}")
        e(f"s_and_b32 s{SRD_W + 1}, s{S_W + 1}, 0xffff")
        e(f"s_mov_b32 s{SRD_W + 2}, {NREC_W}")
        e(f"s_mov_b32 s{SRD_W + 3}, 0x20000")
        e(f"s_mov_b32 s{S_SLOT}, 0")
        for pre, lo in self.dma_row_ops(-1, S_SLOT):
            o.extend(pre)
            e("s_nop 0")
            o.extend(lo)
        e(f"s_lshl_b32 s{S[5]}, s{S_WAVE}, 5")
        e(f"s_add_u32 s{S[5]}, s{S[5]}, 3328")
        e(f"v_add_u32 v{T[1]}, s{S[5]}, v{T[7]}")
        e(f"v_mul_u32_u24 v{T[2]}, 43691, v{T[1]}")
        e(f"v_lshlrev_b32 v{T[3]}, 4, v{T[1]}")
        e(f"v_lshrrev_b32 v{T[2]}, 19, v{T[2]}")
        e(f"v_and_b32 v{T[5]}, 8, v{T[2]}")
        e(f"v_lshlrev_b32 v{T[5]}, 2, v{T[5]}")
        e(f"v_xor_b32 v{V_DW[3]}, v{T[5]}, v{T[3]}")
        for pre, lo in self.dma_w_ops(0, W1):
            o.extend(pre)
            o.extend(lo)
        e(f"v_and_b32 v{T[0]}, 15, v{T[7]}")
        e(f"v_lshrrev_b32 v{T[1]}, 4, v{T[7]}")
        e(f"s_lshr_b32 s{S[5]}, s{S_WAVE}, 1")
        e(f"s_and_b32 s{S[6]}, s{S_WAVE}, 1")
        e(f"s_lshl_b32 s{S[5]}, s{S[5]}, 5")
        e(f"s_mul_i32 s{S[6]}, s{S[6]}, 96")
        e(f"v_lshlrev_b32 v{T[2]}, 4, v{T[1]}")
        for j in range(3):
            e(f"v_add_u32 v{T[3]}, s{S[5]}, v{T[0]}")
            if j:
                e(f"v_add_u32 v{T[3]}, {2 * j}, v{T[3]}")
            e(f"v_and_b32 v{T[4]}, 4, v{T[3]}")
            e(f"v_mul_u32_u24 v{T[5]}, 192, v{T[3]}")
            e(f"v_lshlrev_b32 v{T[4]}, 3, v{T[4]}")
            e(f"v_xor_b32 v{T[4]}, v{T[4]}, v{T[2]}")
            e(f"v_add_u32 v{V_BB[j]}, v{T[5]}, v{T[4]}")
            e(f"v_mov_b32 v{V_BA[j]}, v{V_BB[j]}")
        e(f"v_add_u32 v{T[3]}, s{S[5]}, v{T[0]}")
        e(f"v_mul_u32_u24 v{T[3]}, 192, v{T[3]}")
        e(f"v_lshlrev_b32 v{T[4]}, 3, v{T[1]}")
        e(f"s_add_u32 s{S[7]}, s{S[3]}, s{S[6]}")
        e(f"v_add3_u32 v{V_OUT}, v{T[3]}, v{T[4]}, s{S[7]}")
        e(f"v_lshrrev_b32 v{T[3]}, 2, v{T[0]}")
        e(f"v_lshl_add_u32 v{T[3]}, v{T[1]}, 3, v{T[3]}")
        e(f"v_mul_u32_u24 v{T[3]}, 192, v{T[3]}")
        e(f"v_and_b32 v{T[4]}, 3, v{T[0]}")
        e(f"v_lshlrev_b32 v{T[4]}, 3, v{T[4]}")
        e(f"v_and_b32 v{T[5]}, 1, v{T[1]}")
        e(f"v_lshlrev_b32 v{T[5]}, 5, v{T[5]}")
        e(f"v_add_u32 v{T[4]}, s{S[6]}, v{T[4]}")
        for b in range(3):
            e(f"v_add_u32 v{T[6]}, {32 * b}, v{T[4]}")
            e(f"v_xor_b32 v{T[6]}, v{T[6]}, v{T[5]}")
            e(f"v_add_u32 v{T[6]}, v{T[6]}, v{T[3]}")
            e(f"v_add_u32 v{V_TR1[b]}, {W1}, v{T[6]}")
            e(f"v_add_u32 v{V_TR2[b]}, {W2}, v{T[6]}")
        e(f"s_mov_b32 s{SRD_O}, s{S_O}")
        e(f"s_and_b32 s{SRD_O + 1}, s{S_O + 1}, 0xffff")
        e(f"s_mov_b32 s{SRD_O + 2}, 0")
        e(f"s_mov_b32 s{SRD_O + 3}, 0x20000")
        e(f"s_sub_u32 s{S_OROW}, s{S[2]}, 2")
        e(f"s_mul_i32 s{S_OROW}, s{S_OROW}, {ROWB}")
        def row_burst(q, slot):
            o.extend(self.dma_row_adv())
            e(f"s_mov_b32 s{S_OLD}, {slot * SLOT}")
            for pre, lo in self.dma_row_ops(q, S_OLD):
                o.extend(pre)
                e("s_nop 0")
                o.extend(lo)
        row_burst(0, 1)
        for pre, lo in self.dma_w_ops(1, W2):
            o.extend(pre)
            o.extend(lo)
        row_burst(1, 2)
        row_burst(2, 3)
        return o

    def build(self):
        a = self.args
        segs = []
        setup = self.setup()
        needs = [('row', -1, k) for k in range(4)] + [('w', 0, k) for k in range(14)] + \
                [('row', 0, k) for k in range(4)] + [('w', 1, k) for k in range(14)]
        issue, collect = self.stamp_ops()
        setup.append(Op("s_barrier", 'x', None, needs))
        setup += issue
        tr0 = self.tr_reads(0, V_TR1)
        tr1 = self.tr_reads(1, V_TR2)
        tr2 = self.tr_reads(2, V_TR1)
        pre = []
        pre.append(self.bread(-1, 0))
        for key, ops in tr0[:3]:
            pre += ops
        pre.append(self.bread(-1, 1))
        for key, ops in tr0[3:6]:
            pre += ops
        setup += pre
        extra = {}
        pos = 0
        for key, ops in tr0[6:]:
            extra.setdefault(pos, []).extend(ops)
            pos += 1
        pos = 27
        for key, ops in tr1:
            extra.setdefault(pos, []).extend(ops)
            pos += 1
            if pos >= 47:
                break
        n_tr1_done = pos - 27
        fn = lambda i, j, s, b: [('tr', i, j, s, b, 0), ('tr', i, j, s, b, 1)]
        rowm1 = self.row(-1, (0,), False, False, True, True, 3, extra=extra, first_needs=fn,
                         bar_needs=[('tr', 0, 2, 2, 2, 1)], next_pre=2)
        extra = {}
        pos = 0
        for key, ops in tr1[n_tr1_done:]:
            extra.setdefault(pos, []).extend(ops)
            pos += 1
        d = self.dma_w_ops(2, W1)
        pos = 1
        for pre_, lo in d:
            extra.setdefault(pos, []).extend(pre_)
            extra.setdefault(pos + 1, []).extend(lo)
            pos += 3
        pbar = 66
        extra.setdefault(pbar, []).append(Op("s_barrier", 'x', None, [('w', 2, k) for k in range(14)]))
        pos = pbar
        for key, ops in tr2:
            extra.setdefault(pos, []).extend(ops)
            pos += 1
        row0 = self.row(0, (1, 0), False, False, True, True, 2, extra=extra, first_needs=fn,
                        bar_needs=[('tr', 2, 2, 2, 2, 1)], next_pre=2)
        row0.append(Op(f"s_mov_b32 s{S_CNT}, 14"))

        def body(q):
            ops = self.row(q, (2, 1, 0), True, True, True, True, 2, label="L_loop")
            ops.append(Op(f"s_sub_u32 s{S_CNT}, s{S_CNT}, 1"))
            ops.append(Op(f"s_cmp_lg_u32 s{S_CNT}, 0"))
            ops.append(Op("s_cbranch_scc1 L_loop"))
            return ops
        row15 = self.row(15, (2, 1), True, True, True, False, 2)
        row16 = self.row(16, (2,), True, True, False, False, 3)
        tail = [Op("s_nop 7"), Op("s_nop 1")]
        for grp in self.epilogue(16, 1):
            tail += grp
        if a.stamps:
            tail.append(Op("s_waitcnt lgkmcnt(0)"))
            issue, collect = self.stamp_ops()
            tail += collect
            tail.append(Op("s_waitcnt vmcnt(0)"))
            tail += issue
            tail.append(Op(f"s_memrealtime s[{S_RT}:{S_RT + 1}]"))
            tail.append(Op("s_waitcnt lgkmcnt(0)"))
            tail += collect
            tail.append(Op(f"v_writelane_b32 v{V_STAMP}, s{S_RT}, 63"))
            e = lambda t: tail.append(Op(t))
            e(f"s_mov_b32 s{SRD_D}, s{S_WS}")
            e(f"s_and_b32 s{SRD_D + 1}, s{S_WS + 1}, 0xffff")
            e(f"s_mov_b32 s{SRD_D + 2}, {256 * 4 * 256}")
            e(f"s_mov_b32 s{SRD_D + 3}, 0x20000")
            e(f"s_lshl_b32 s{S_T[0]}, s2, 10")
            e(f"v_lshlrev_b32 v{V_T[0]}, 2, v0")
            e(f"buffer_store_dword v{V_STAMP}, v{V_T[0]}, s[{SRD_D}:{SRD_D + 3}], s{S_T[0]} offen")
            if a.dbg:
                e(f"s_load_dwordx2 s[{S_WS}:{S_WS + 1}], s[0:1], 24")
                e("s_waitcnt lgkmcnt(0)")
                e(f"s_mov_b32 s{SRD_D}, s{S_WS}")
                e(f"s_and_b32 s{SRD_D + 1}, s{S_WS + 1}, 0xffff")
                e(f"s_mov_b32 s{SRD_D + 2}, 64")
                T = V_T
                S = S_T
                def rl(sreg, lane):
                    e(f"v_readlane_b32 s{sreg}, v{V_STAMP}, {lane}")
                rl(S[0], 0); rl(S[1], 1); rl(S[2], 2); rl(S[3], 3); rl(S[4], 19); rl(S[5], 62); rl(S[6], 63)
                e("s_nop 4")
                vals = []
                e(f"s_sub_u32 s{S[7]}, s{S[4]}, s{S[0]}")
                e(f"s_sub_u32 s{S[8]}, s{S[1]}, s{S[0]}")
                e(f"s_sub_u32 s{S[4]}, s{S[2]}, s{S[1]}")
                e(f"s_sub_u32 s{S[3]}, s{S[3]}, s{S[2]}")
                e(f"s_sub_u32 s{S[2]}, s{S[6]}, s{S[5]}")
                e(f"s_not_b32 s{S[5]}, s{S[5]}")
                e(f"s_not_b32 s{S[0]}, s{S[7]}")
                e(f"s_not_b32 s{S[1]}, s{S[8]}")
                e(f"v_mov_b32 v{T[1]}, 0")
                e(f"s_mov_b64 exec, 1")
                for idx, sr in enumerate([S[6], S[5], S[7], S[8], S[0], S[1], S[4], S[3], S[2]]):
                    e(f"v_mov_b32 v{T[0]}, s{sr}")
                    e(f"buffer_atomic_umax v{T[0]}, v{T[1]}, s[{SRD_D}:{SRD_D + 3}], 0 offen offset:{4 * idx}")
                e(f"s_mov_b64 exec, -1")
        tail.append(Op("L_end:", 'label'))
        tail.append(Op("s_endpgm"))

        fixed1 = setup + rowm1 + row0
        bodies = [body(q) for q in range(1, 15)]
        for bq in bodies[1:]:
            assert [x.text for x in bq] == [x.text for x in bodies[0]]
        fixed2 = row15 + row16 + tail
        seq = [('f1', i, op) for i, op in enumerate(fixed1)]
        for bq in bodies:
            seq += [('body', i, op) for i, op in enumerate(bq)]
        seq += [('f2', i, op) for i, op in enumerate(fixed2)]

        waits = {}
        dsq, vmq = {}, {}
        nds = nvm = 0
        for seg, i, op in seq:
            for t in op.needs:
                w = waits.setdefault((seg, i), [None, None])
                if t == 'LGKM0':
                    w[0] = 0
                elif t in dsq:
                    nn = min(nds - 1 - dsq[t], 14)
                    w[0] = nn if w[0] is None else min(w[0], nn)
                elif t in vmq:
                    nn = min(nvm - 1 - vmq[t], 62)
                    w[1] = nn if w[1] is None else min(w[1], nn)
                else:
                    raise RuntimeError(f"unknown tag {t} at {seg} {i} {op.text}")
            if op.kind == 'ds':
                dsq[op.tag] = nds
                nds += 1
            elif op.kind == 'vm':
                vmq[op.tag] = nvm
                nvm += 1
        useful = set()
        nds = nvm = 0
        ds_done = vm_done = 0
        for seg, i, op in seq:
            w = waits.get((seg, i))
            if w:
                if w[0] is not None and nds - w[0] > ds_done:
                    ds_done = nds - w[0]
                    useful.add((seg, i, 0))
                if w[1] is not None and nvm - w[1] > vm_done:
                    vm_done = nvm - w[1]
                    useful.add((seg, i, 1))
                for t in op.needs:
                    if t == 'LGKM0':
                        assert ds_done == nds
                    elif t in dsq:
                        assert dsq[t] < ds_done, (seg, i, t)
                    else:
                        assert vmq[t] < vm_done, (seg, i, t)
            if op.kind == 'ds':
                nds += 1
            elif op.kind == 'vm':
                nvm += 1

        def emit(seg, ops):
            lines = []
            for i, op in enumerate(ops):
                w = waits.get((seg, i))
                if w:
                    parts = []
                    if w[1] is not None and (seg, i, 1) in useful:
                        parts.append(f"vmcnt({w[1]})")
                    if w[0] is not None and ((seg, i, 0) in useful or 'LGKM0' in op.needs):
                        parts.append(f"lgkmcnt({w[0]})")
                    if parts:
                        lines.append("    s_waitcnt " + " ".join(parts))
                if op.kind == 'label':
                    lines.append(op.text)
                else:
                    lines.append("    " + op.text)
            return lines
        lines = emit('f1', fixed1)
        lines.append("    .p2align 3" if False else "")
        lines += emit('body', bodies[0]) + emit('f2', fixed2)
        return lines


HEADER = """; Kernarg layout for this problem (40 bytes, ptrs only, base s[0:1]):
; @launch grid=(256,1,1) block=(256,1,1) lds=163840
.amdgcn_target "amdgcn-amd-amdhsa--gfx950"
.text
.globl standalone__dilated_atrous__vision_kernel
.p2align 8
.type standalone__dilated_atrous__vision_kernel,@function
standalone__dilated_atrous__vision_kernel:
"""

FOOTER = """.section .rodata,"a"
.p2align 6
.amdhsa_kernel standalone__dilated_atrous__vision_kernel
  .amdhsa_next_free_vgpr 512
  .amdhsa_next_free_sgpr 64
  .amdhsa_accum_offset 256
  .amdhsa_group_segment_fixed_size 0
  .amdhsa_kernarg_size 40
  .amdhsa_user_sgpr_count 2
  .amdhsa_user_sgpr_kernarg_segment_ptr 1
  .amdhsa_system_sgpr_workgroup_id_x 1
.end_amdhsa_kernel
"""


def main():
    ap = argparse.ArgumentParser()
    ap.add_argument('-o', default='-')
    ap.add_argument('--stamps', action='store_true')
    ap.add_argument('--dbg', action='store_true')
    ap.add_argument('--nt-in', action='store_true', dest='nt_in')
    ap.add_argument('--store-mod', default='', dest='store_mod')
    args = ap.parse_args()
    if args.store_mod:
        args.store_mod = ' ' + args.store_mod.replace('+', ' ')
    g = Gen(args)
    lines = g.build()
    txt = HEADER + "\n".join(l for l in lines if l) + "\n" + FOOTER
    if args.o == '-':
        sys.stdout.write(txt)
    else:
        open(args.o, 'w').write(txt)


if __name__ == '__main__':
    main()
```

```python
import argparse
import sys

ROWB = 512 * 96 * 2
NREC_X = 512 * ROWB
NREC_W = 9 * 96 * 96 * 2
SLOT = 13312
NSLOT = 4
W1 = NSLOT * SLOT
WSL = 55296
W2 = W1 + WSL
LDS_BYTES = W2 + WSL
BIG = 0x80000000

V_TID = 0
V_DX = [2, 3, 4, 5]
V_BB = [6, 7, 8]
V_BA = [9, 10, 11]
V_OUT = 12
V_DW = [13, 14, 15, 16]
V_TR1 = [17, 18, 19]
V_TR2 = [20, 21, 22]
V_T = [23, 24, 25, 26, 27, 28, 29, 30, 31]
NB = 6
V_B = 32
V_PK = 56
V_ACC = 68
V_W = 140
V_STAMP = 210

S_X, S_W, S_O = 4, 6, 8
SRD_X, SRD_W, SRD_O = 12, 16, 20
S_WAVE = 24
S_WK = [26, 27, 28, 29]
S_SLOT = 30
S_OLD = 31
S_XROW = 32
S_XH = 33
S_LIM = 34
S_OROW = 35
S_CNT = 36
S_T = [37, 38, 39, 40, 41, 42, 43, 44, 45]
S_WOFF = 46
S_STAMP = 48
S_WS = 50
SRD_D = 52
S_SIDX = 56
S_RT = 58


def acc(i, pb, b):
    r = V_ACC + ((i * 2 + pb) * 3 + b) * 4
    return r


def vr(r, n=4):
    return f"v[{r}:{r + n - 1}]"


def afrag(i, j, s, b):
    f = ((i * 3 + j) * 3 + s) * 3 + b
    if f < 64:
        return ('a', 4 * f)
    return ('v', V_W + 4 * (f - 64))


def regs(kind_r, lo, n):
    k, r = kind_r
    return f"{k}[{r + lo}:{r + lo + n - 1}]"


class Op:
    __slots__ = ('text', 'kind', 'tag', 'needs', 'site')

    def __init__(self, text, kind='x', tag=None, needs=()):
        self.text = text
        self.kind = kind
        self.tag = tag
        self.needs = list(needs)
        self.site = None


def mfma(d, a, bfrag, c):
    cs = '0' if c is None else vr(c)
    return f"v_mfma_f32_16x16x32_bf16 {vr(d)}, {regs(a, 0, 4)}, {vr(bfrag)}, {cs}"


class Gen:
    def __init__(self, args):
        self.args = args

    def dma_row_ops(self, q, dest):
        out = []
        nt = ' nt' if self.args.nt_in else ''
        for k in range(4):
            pre = [Op(f"s_add_u32 m0, s{dest}, s{S_WK[k]}")]
            ld = f"buffer_load_dwordx4 v{V_DX[k]}, s[{SRD_X}:{SRD_X + 3}], s{S_XROW} offen{nt} lds"
            if k < 3:
                lo = [Op(ld, 'vm', ('row', q, k))]
            else:
                lo = [Op("s_mov_b64 exec, 0xfff"), Op(ld, 'vm', ('row', q, k)), Op("s_mov_b64 exec, -1")]
            out.append((pre, lo))
        return out

    def dma_row_adv(self):
        return [Op(f"s_add_u32 s{S_XROW}, s{S_XROW}, {2 * ROWB}"),
                Op(f"s_add_u32 s{S_XH}, s{S_XH}, 2"),
                Op(f"s_cmp_lt_u32 s{S_XH}, s{S_LIM}"),
                Op(f"s_cselect_b32 s{SRD_X + 2}, {NREC_X}, 0")]

    def dma_w_ops(self, i, base):
        out = []
        for k in range(13):
            kap, m = k % 3, k // 3
            pre = [Op(f"s_add_u32 m0, s{S_WK[0]}, {base + 4096 * k}"),
                   Op(f"s_mov_b32 s{S_WOFF}, {i * WSL + 12288 * m}")]
            ld = f"buffer_load_dwordx4 v{V_DW[kap]}, s[{SRD_W}:{SRD_W + 3}], s{S_WOFF} offen lds"
            out.append((pre, [Op(ld, 'vm', ('w', i, k))]))
        pre = [Op(f"s_lshr_b32 s{S_T[0]}, s{S_WK[0]}, 1"),
               Op(f"s_add_u32 m0, s{S_T[0]}, {base + 53248}"),
               Op(f"s_mov_b32 s{S_WOFF}, {i * WSL}")]
        ld = f"buffer_load_dwordx4 v{V_DW[3]}, s[{SRD_W}:{SRD_W + 3}], s{S_WOFF} offen lds"
        out.append((pre, [Op("s_mov_b32 exec_hi, 0"), Op(ld, 'vm', ('w', i, 13)), Op("s_mov_b64 exec, -1")]))
        return out

    def tr_reads(self, i, vtr):
        out = []
        for j in range(3):
            for s in range(3):
                for b in range(3):
                    a = afrag(i, j, s, b)
                    ops = []
                    for e in range(2):
                        off = j * 18432 + s * 6144 + e * 768
                        ops.append(Op(f"ds_read_b64_tr_b16 {regs(a, 2 * e, 2)}, v{vtr[b]} offset:{off}", 'ds',
                                      ('tr', i, j, s, b, e)))
                    out.append(((j, s, b), ops))
        return out

    def bread(self, q, k):
        pb, idx = divmod(k, 9)
        j, s = divmod(idx, 3)
        buf = V_B + 4 * (k % NB)
        off = pb * 3072 + s * 64
        return Op(f"ds_read_b128 {vr(buf)}, v{V_BA[j]} offset:{off}", 'ds', ('b', q, k))

    def epilogue(self, q, pb):
        st = self.args.store_mod
        groups = []
        for b in range(3):
            a = acc(2, pb, b)
            pk = V_PK + 6 * pb + 2 * b
            groups.append([Op(f"v_cvt_pk_bf16_f32 v{pk}, v{a}, v{a + 1}")])
            groups.append([Op(f"v_cvt_pk_bf16_f32 v{pk + 1}, v{a + 2}, v{a + 3}")])
            groups.append([Op(f"buffer_store_dwordx2 v[{pk}:{pk + 1}], v{V_OUT}, s[{SRD_O}:{SRD_O + 3}], s{S_OROW} offen "
                              f"offset:{pb * 3072 + 32 * b}{st}", 'vm', ('st', q, pb, b))])
        return groups

    def slot_adv(self):
        return [Op(f"s_mov_b32 s{S_OLD}, s{S_SLOT}"),
                Op(f"s_add_u32 s{S_SLOT}, s{S_SLOT}, {SLOT}"),
                Op(f"s_cmp_eq_u32 s{S_SLOT}, {NSLOT * SLOT}"),
                Op(f"s_cselect_b32 s{S_SLOT}, 0, s{S_SLOT}")]

    def stamp_ops(self):
        if not self.args.stamps:
            return [], []
        collect = [Op(f"s_mov_b32 m0, s{S_SIDX}"), Op("s_nop 0"),
                   Op(f"v_writelane_b32 v{V_STAMP}, s{S_STAMP}, m0"),
                   Op(f"s_add_u32 s{S_SIDX}, s{S_SIDX}, 1")]
        issue = [Op(f"s_memtime s[{S_STAMP}:{S_STAMP + 1}]")]
        return issue, collect

    def row(self, q, iset, epi_prev, epi_cur, has_next, dma_next, pf, extra=None, first_needs=None,
            bar_needs=(), pre_issued=2, next_pre=2, label=None):
        a = self.args
        g = 3 * len(iset)
        n = 18 * g
        back = []
        for k in range(18):
            pb, idx = divmod(k, 9)
            j, s = divmod(idx, 3)
            buf = V_B + 4 * (k % NB)
            first = True
            order = list(iset)
            for i in order:
                for b in range(3):
                    d = acc(i, pb, b)
                    if idx == 0:
                        c = None if i == 0 else acc(i - 1, pb, b)
                    else:
                        c = d
                    needs = []
                    if first:
                        needs.append(('b', q, k))
                        first = False
                    if first_needs is not None and pb == 0:
                        needs += first_needs(i, j, s, b)
                    back.append(Op(mfma(d, afrag(i, j, s, b), buf, c), 'mfma', None, needs))
        fill = {}

        def add(pos, ops):
            fill.setdefault(pos, []).extend(ops)

        last_k_before_bar = 18 - next_pre
        for k in range(pre_issued, 18):
            src = max(k - pf, 0)
            src = min(src, last_k_before_bar - 1) if has_next else src
            pos = src * g + 1 if src * g + 1 < n else n
            if k - pf < 0:
                pos = 0
            add(pos, [self.bread(q, k)])
        step = max(1, g // 3)

        def place_epi(groups, k0):
            pos = k0 * g + min(2, g - 1)
            for grp in groups:
                add(pos, grp)
                pos += step if g < 9 else 2
        if epi_prev:
            place_epi(self.epilogue(q - 1, 1), 1 if g == 9 else 3)
        if epi_cur:
            mid = 8 * g + g // 2
            add(mid, [Op(f"s_add_u32 s{S_OROW}, s{S_OROW}, {2 * ROWB}"),
                      Op(f"s_mov_b32 s{SRD_O + 2}, {NREC_X}")])
            place_epi(self.epilogue(q, 0), 10 if g == 9 else 12)
        if has_next:
            kb = last_k_before_bar
            pb0 = kb * g
            add(pb0 - g, self.slot_adv())
            if dma_next:
                add(pb0 - g + 1 if g > 1 else pb0 - g, self.dma_row_adv())
            needs = [('row', q + 1, k) for k in range(4)] + [('b', q, 17)] + list(bar_needs)
            issue, collect = self.stamp_ops()
            add(pb0, [Op("s_barrier", 'x', None, needs + ['LGKM0'])] + collect + issue)
            add(pb0 + 1, [Op(f"v_add_u32 v{V_BA[0]}, s{S_SLOT}, v{V_BB[0]}")])
            add(pb0 + 2, [Op(f"v_add_u32 v{V_BA[1]}, s{S_SLOT}, v{V_BB[1]}")])
            add(pb0 + 2, [])
            for kk in range(next_pre):
                pos = pb0 + 2 + kk * g
                if kk == 0:
                    pos = pb0 + 2
                add(min(pos, n), [self.bread(q + 1, kk)])
            add(min(pb0 + 3, n), [Op(f"v_add_u32 v{V_BA[2]}, s{S_SLOT}, v{V_BB[2]}")])
            if dma_next:
                d = self.dma_row_ops(q + NSLOT, S_OLD)
                span = n - pb0
                stride = max(1, (span - 4) // 4)
                p0 = pb0 + (3 if span >= 12 else 1)
                for t, (pre, lo) in enumerate(d):
                    p = p0 + t * stride
                    add(p, pre)
                    add(p + 1, lo)
        if extra:
            for pos, ops in extra.items():
                add(pos, ops)
        ops = []
        if label:
            ops.append(Op(label + ':', 'label'))
        for p in range(n + 1):
            ops.extend(fill.get(p, []))
            if p < n:
                ops.append(back[p])
        assert all(p <= n for p in fill), (q, max(fill), n)
        return ops

    def setup(self):
        o = []
        e = lambda t, *r, **k: o.append(Op(t, *r, **k))
        T = V_T
        S = S_T
        e("s_cmp_ge_u32 s2, 256")
        e("s_cbranch_scc1 L_end")
        e(f"s_load_dwordx4 s[{S_X}:{S_X + 3}], s[0:1], 0")
        e(f"s_load_dwordx2 s[{S_O}:{S_O + 1}], s[0:1], 16")
        if self.args.stamps:
            e(f"s_load_dwordx2 s[{S_WS}:{S_WS + 1}], s[0:1], 32")
            e(f"s_memtime s[{S_STAMP}:{S_STAMP + 1}]")
            e(f"s_memrealtime s[{S_RT}:{S_RT + 1}]")
            e(f"s_mov_b32 s{S_SIDX}, 0")
            e(f"v_mov_b32 v{V_STAMP}, 0")
        e(f"v_lshrrev_b32 v{T[0]}, 6, v0")
        e(f"s_and_b32 s{S[0]}, s2, 7")
        e(f"v_readfirstlane_b32 s{S_WAVE}, v{T[0]}")
        e(f"s_lshr_b32 s{S[1]}, s2, 3")
        e(f"s_and_b32 s{S[1]}, s{S[1]}, 1")
        e(f"s_lshr_b32 s{S[2]}, s2, 4")
        e(f"s_lshl_b32 s{S[2]}, s{S[2]}, 5")
        e(f"s_add_u32 s{S[2]}, s{S[2]}, s{S[1]}")
        e(f"s_mul_i32 s{S[3]}, s{S[0]}, 12288")
        e(f"s_sub_u32 s{S[4]}, s{S[3]}, 384")
        for k in range(3):
            if k == 0:
                L = V_TID
            else:
                L = T[1]
                e(f"v_add_u32 v{L}, {256 * k}, v0")
            e(f"v_mul_u32_u24 v{T[2]}, 43691, v{L}")
            e(f"v_lshlrev_b32 v{T[3]}, 4, v{L}")
            e(f"v_lshrrev_b32 v{T[2]}, 19, v{T[2]}")
            e(f"v_and_b32 v{T[4]}, 4, v{T[2]}")
            e(f"v_and_b32 v{T[5]}, 8, v{T[2]}")
            e(f"v_lshlrev_b32 v{T[4]}, 3, v{T[4]}")
            e(f"v_lshlrev_b32 v{T[5]}, 2, v{T[5]}")
            e(f"v_xor_b32 v{T[4]}, v{T[4]}, v{T[3]}")
            e(f"v_xor_b32 v{V_DW[k]}, v{T[5]}, v{T[3]}")
            e(f"v_add_u32 v{V_DX[k]}, s{S[4]}, v{T[4]}")
        e(f"s_cmp_eq_u32 s{S[0]}, 0")
        e(f"s_cselect_b32 s{S[5]}, 24, 0")
        e(f"v_mov_b32 v{T[6]}, {BIG:#x}")
        e(f"v_cmp_gt_u32 vcc, s{S[5]}, v0")
        e(f"v_and_b32 v{T[7]}, 63, v0")
        e(f"s_lshl_b32 s{S_WK[0]}, s{S_WAVE}, 10")
        e(f"v_cndmask_b32 v{V_DX[0]}, v{V_DX[0]}, v{T[6]}, vcc")
        e(f"s_add_u32 s{S_WK[1]}, s{S_WK[0]}, 4096")
        e(f"s_add_u32 s{S_WK[2]}, s{S_WK[0]}, 8192")
        e(f"s_mul_i32 s{S[6]}, s{S_WAVE}, 192")
        e(f"s_add_u32 s{S_WK[3]}, s{S[6]}, 12288")
        e(f"s_add_u32 s{S[7]}, s{S[4]}, s{S_WK[3]}")
        e(f"s_lshl_b32 s{S[8]}, s{S[0]}, 2")
        e(f"s_add_u32 s{S[8]}, s{S[8]}, s{S_WAVE}")
        e(f"s_cmp_ge_u32 s{S[8]}, 30")
        e(f"s_cselect_b32 s{S[7]}, {BIG:#x}, s{S[7]}")
        e(f"v_lshlrev_b32 v{T[0]}, 4, v{T[7]}")
        e(f"v_add_u32 v{V_DX[3]}, s{S[7]}, v{T[0]}")
        e(f"s_sub_u32 s{S_XH}, s{S[2]}, 2")
        e(f"s_mul_i32 s{S_XROW}, s{S_XH}, {ROWB}")
        e(f"s_add_u32 s{S_LIM}, s{S[2]}, 33")
        e(f"s_min_u32 s{S_LIM}, s{S_LIM}, 512")
        e(f"s_waitcnt lgkmcnt(0)")
        if self.args.stamps:
            e(f"v_writelane_b32 v{V_STAMP}, s{S_STAMP}, 0")
            e(f"v_writelane_b32 v{V_STAMP}, s{S_RT}, 62")
            e(f"s_mov_b32 s{S_SIDX}, 1")
        e(f"s_mov_b32 s{SRD_X}, s{S_X}")
        e(f"s_and_b32 s{SRD_X + 1}, s{S_X + 1}, 0xffff")
        e(f"s_cmp_lt_u32 s{S_XH}, s{S_LIM}")
        e(f"s_cselect_b32 s{SRD_X + 2}, {NREC_X}, 0")
        e(f"s_mov_b32 s{SRD_X + 3}, 0x20000")
        e(f"s_mov_b32 s{SRD_W}, s{S_W}")
        e(f"s_and_b32 s{SRD_W + 1}, s{S_W + 1}, 0xffff")
        e(f"s_mov_b32 s{SRD_W + 2}, {NREC_W}")
        e(f"s_mov_b32 s{SRD_W + 3}, 0x20000")
        e(f"s_mov_b32 s{S_SLOT}, 0")
        for pre, lo in self.dma_row_ops(-1, S_SLOT):
            o.extend(pre)
            e("s_nop 0")
            o.extend(lo)
        e(f"s_lshl_b32 s{S[5]}, s{S_WAVE}, 5")
        e(f"s_add_u32 s{S[5]}, s{S[5]}, 3328")
        e(f"v_add_u32 v{T[1]}, s{S[5]}, v{T[7]}")
        e(f"v_mul_u32_u24 v{T[2]}, 43691, v{T[1]}")
        e(f"v_lshlrev_b32 v{T[3]}, 4, v{T[1]}")
        e(f"v_lshrrev_b32 v{T[2]}, 19, v{T[2]}")
        e(f"v_and_b32 v{T[5]}, 8, v{T[2]}")
        e(f"v_lshlrev_b32 v{T[5]}, 2, v{T[5]}")
        e(f"v_xor_b32 v{V_DW[3]}, v{T[5]}, v{T[3]}")
        for pre, lo in self.dma_w_ops(0, W1):
            o.extend(pre)
            o.extend(lo)
        e(f"v_and_b32 v{T[0]}, 15, v{T[7]}")
        e(f"v_lshrrev_b32 v{T[1]}, 4, v{T[7]}")
        e(f"s_lshr_b32 s{S[5]}, s{S_WAVE}, 1")
        e(f"s_and_b32 s{S[6]}, s{S_WAVE}, 1")
        e(f"s_lshl_b32 s{S[5]}, s{S[5]}, 5")
        e(f"s_mul_i32 s{S[6]}, s{S[6]}, 96")
        e(f"v_lshlrev_b32 v{T[2]}, 4, v{T[1]}")
        for j in range(3):
            e(f"v_add_u32 v{T[3]}, s{S[5]}, v{T[0]}")
            if j:
                e(f"v_add_u32 v{T[3]}, {2 * j}, v{T[3]}")
            e(f"v_and_b32 v{T[4]}, 4, v{T[3]}")
            e(f"v_mul_u32_u24 v{T[5]}, 192, v{T[3]}")
            e(f"v_lshlrev_b32 v{T[4]}, 3, v{T[4]}")
            e(f"v_xor_b32 v{T[4]}, v{T[4]}, v{T[2]}")
            e(f"v_add_u32 v{V_BB[j]}, v{T[5]}, v{T[4]}")
            e(f"v_mov_b32 v{V_BA[j]}, v{V_BB[j]}")
        e(f"v_add_u32 v{T[3]}, s{S[5]}, v{T[0]}")
        e(f"v_mul_u32_u24 v{T[3]}, 192, v{T[3]}")
        e(f"v_lshlrev_b32 v{T[4]}, 3, v{T[1]}")
        e(f"s_add_u32 s{S[7]}, s{S[3]}, s{S[6]}")
        e(f"v_add3_u32 v{V_OUT}, v{T[3]}, v{T[4]}, s{S[7]}")
        e(f"v_lshrrev_b32 v{T[3]}, 2, v{T[0]}")
        e(f"v_lshl_add_u32 v{T[3]}, v{T[1]}, 3, v{T[3]}")
        e(f"v_mul_u32_u24 v{T[3]}, 192, v{T[3]}")
        e(f"v_and_b32 v{T[4]}, 3, v{T[0]}")
        e(f"v_lshlrev_b32 v{T[4]}, 3, v{T[4]}")
        e(f"v_and_b32 v{T[5]}, 1, v{T[1]}")
        e(f"v_lshlrev_b32 v{T[5]}, 5, v{T[5]}")
        e(f"v_add_u32 v{T[4]}, s{S[6]}, v{T[4]}")
        for b in range(3):
            e(f"v_add_u32 v{T[6]}, {32 * b}, v{T[4]}")
            e(f"v_xor_b32 v{T[6]}, v{T[6]}, v{T[5]}")
            e(f"v_add_u32 v{T[6]}, v{T[6]}, v{T[3]}")
            e(f"v_add_u32 v{V_TR1[b]}, {W1}, v{T[6]}")
            e(f"v_add_u32 v{V_TR2[b]}, {W2}, v{T[6]}")
        e(f"s_mov_b32 s{SRD_O}, s{S_O}")
        e(f"s_and_b32 s{SRD_O + 1}, s{S_O + 1}, 0xffff")
        e(f"s_mov_b32 s{SRD_O + 2}, 0")
        e(f"s_mov_b32 s{SRD_O + 3}, 0x20000")
        e(f"s_sub_u32 s{S_OROW}, s{S[2]}, 2")
        e(f"s_mul_i32 s{S_OROW}, s{S_OROW}, {ROWB}")
        def row_burst(q, slot):
            o.extend(self.dma_row_adv())
            e(f"s_mov_b32 s{S_OLD}, {slot * SLOT}")
            for pre, lo in self.dma_row_ops(q, S_OLD):
                o.extend(pre)
                e("s_nop 0")
                o.extend(lo)
        row_burst(0, 1)
        for pre, lo in self.dma_w_ops(1, W2):
            o.extend(pre)
            o.extend(lo)
        row_burst(1, 2)
        row_burst(2, 3)
        return o

    def build(self):
        a = self.args
        segs = []
        setup = self.setup()
        needs = [('row', -1, k) for k in range(4)] + [('w', 0, k) for k in range(14)] + \
                [('row', 0, k) for k in range(4)] + [('w', 1, k) for k in range(14)]
        issue, collect = self.stamp_ops()
        setup.append(Op("s_barrier", 'x', None, needs))
        setup += issue
        tr0 = self.tr_reads(0, V_TR1)
        tr1 = self.tr_reads(1, V_TR2)
        tr2 = self.tr_reads(2, V_TR1)
        pre = []
        pre.append(self.bread(-1, 0))
        for key, ops in tr0[:3]:
            pre += ops
        pre.append(self.bread(-1, 1))
        for key, ops in tr0[3:6]:
            pre += ops
        setup += pre
        extra = {}
        pos = 0
        for key, ops in tr0[6:]:
            extra.setdefault(pos, []).extend(ops)
            pos += 1
        pos = 27
        for key, ops in tr1:
            extra.setdefault(pos, []).extend(ops)
            pos += 1
            if pos >= 47:
                break
        n_tr1_done = pos - 27
        fn = lambda i, j, s, b: [('tr', i, j, s, b, 0), ('tr', i, j, s, b, 1)]
        rowm1 = self.row(-1, (0,), False, False, True, True, 3, extra=extra, first_needs=fn,
                         bar_needs=[('tr', 0, 2, 2, 2, 1)], next_pre=2)
        extra = {}
        pos = 0
        for key, ops in tr1[n_tr1_done:]:
            extra.setdefault(pos, []).extend(ops)
            pos += 1
        d = self.dma_w_ops(2, W1)
        pos = 1
        for pre_, lo in d:
            extra.setdefault(pos, []).extend(pre_)
            extra.setdefault(pos + 1, []).extend(lo)
            pos += 3
        pbar = 66
        extra.setdefault(pbar, []).append(Op("s_barrier", 'x', None, [('w', 2, k) for k in range(14)]))
        pos = pbar
        for key, ops in tr2:
            extra.setdefault(pos, []).extend(ops)
            pos += 1
        row0 = self.row(0, (1, 0), False, False, True, True, 2, extra=extra, first_needs=fn,
                        bar_needs=[('tr', 2, 2, 2, 2, 1)], next_pre=2)
        row0.append(Op(f"s_mov_b32 s{S_CNT}, 14"))

        def body(q):
            ops = self.row(q, (2, 1, 0), True, True, True, True, 2, label="L_loop")
            ops.append(Op(f"s_sub_u32 s{S_CNT}, s{S_CNT}, 1"))
            ops.append(Op(f"s_cmp_lg_u32 s{S_CNT}, 0"))
            ops.append(Op("s_cbranch_scc1 L_loop"))
            return ops
        row15 = self.row(15, (2, 1), True, True, True, False, 2)
        row16 = self.row(16, (2,), True, True, False, False, 3)
        tail = [Op("s_nop 7"), Op("s_nop 1")]
        for grp in self.epilogue(16, 1):
            tail += grp
        if a.stamps:
            tail.append(Op("s_waitcnt lgkmcnt(0)"))
            issue, collect = self.stamp_ops()
            tail += collect
            tail.append(Op("s_waitcnt vmcnt(0)"))
            tail += issue
            tail.append(Op(f"s_memrealtime s[{S_RT}:{S_RT + 1}]"))
            tail.append(Op("s_waitcnt lgkmcnt(0)"))
            tail += collect
            tail.append(Op(f"v_writelane_b32 v{V_STAMP}, s{S_RT}, 63"))
            e = lambda t: tail.append(Op(t))
            e(f"s_mov_b32 s{SRD_D}, s{S_WS}")
            e(f"s_and_b32 s{SRD_D + 1}, s{S_WS + 1}, 0xffff")
            e(f"s_mov_b32 s{SRD_D + 2}, {256 * 4 * 256}")
            e(f"s_mov_b32 s{SRD_D + 3}, 0x20000")
            e(f"s_lshl_b32 s{S_T[0]}, s2, 10")
            e(f"v_lshlrev_b32 v{V_T[0]}, 2, v0")
            e(f"buffer_store_dword v{V_STAMP}, v{V_T[0]}, s[{SRD_D}:{SRD_D + 3}], s{S_T[0]} offen")
            if a.dbg:
                e(f"s_load_dwordx2 s[{S_WS}:{S_WS + 1}], s[0:1], 24")
                e("s_waitcnt lgkmcnt(0)")
                e(f"s_mov_b32 s{SRD_D}, s{S_WS}")
                e(f"s_and_b32 s{SRD_D + 1}, s{S_WS + 1}, 0xffff")
                e(f"s_mov_b32 s{SRD_D + 2}, 64")
                T = V_T
                S = S_T
                e(f"s_and_b32 s{S[0]}, s2, 31")
                e(f"s_add_u32 s{S[0]}, s{S[0]}, s{S_WAVE}")
                e(f"s_cmp_lg_u32 s{S[0]}, 0")
                e("s_cbranch_scc1 L_end")
                def rl(sreg, lane):
                    e(f"v_readlane_b32 s{sreg}, v{V_STAMP}, {lane}")
                rl(S[0], 0); rl(S[4], 19); rl(S[5], 62); rl(S[6], 63)
                e("s_nop 4")
                e(f"s_sub_u32 s{S[7]}, s{S[4]}, s{S[0]}")
                e(f"s_sub_u32 s{S[2]}, s{S[6]}, s{S[5]}")
                e(f"s_lshr_b32 s{S[7]}, s{S[7]}, 4")
                e(f"s_lshl_b32 s{S[7]}, s{S[7]}, 16")
                e(f"s_or_b32 s{S[2]}, s{S[2]}, s{S[7]}")
                e(f"s_lshr_b32 s{S[3]}, s2, 5")
                e(f"s_lshl_b32 s{S[3]}, s{S[3]}, 3")
                e(f"v_mov_b32 v{T[1]}, 0")
                e(f"v_mov_b32 v{T[2]}, s{S[5]}")
                e(f"v_mov_b32 v{T[3]}, s{S[2]}")
                e(f"s_mov_b64 exec, 1")
                e(f"buffer_store_dword v{T[2]}, v{T[1]}, s[{SRD_D}:{SRD_D + 3}], s{S[3]} offen")
                e(f"buffer_store_dword v{T[3]}, v{T[1]}, s[{SRD_D}:{SRD_D + 3}], s{S[3]} offen offset:4")
                e(f"s_mov_b64 exec, -1")
        tail.append(Op("L_end:", 'label'))
        tail.append(Op("s_endpgm"))

        fixed1 = setup + rowm1 + row0
        bodies = [body(q) for q in range(1, 15)]
        for bq in bodies[1:]:
            assert [x.text for x in bq] == [x.text for x in bodies[0]]
        fixed2 = row15 + row16 + tail
        seq = [('f1', i, op) for i, op in enumerate(fixed1)]
        for bq in bodies:
            seq += [('body', i, op) for i, op in enumerate(bq)]
        seq += [('f2', i, op) for i, op in enumerate(fixed2)]

        waits = {}
        dsq, vmq = {}, {}
        nds = nvm = 0
        for seg, i, op in seq:
            for t in op.needs:
                w = waits.setdefault((seg, i), [None, None])
                if t == 'LGKM0':
                    w[0] = 0
                elif t in dsq:
                    nn = min(nds - 1 - dsq[t], 14)
                    w[0] = nn if w[0] is None else min(w[0], nn)
                elif t in vmq:
                    nn = min(nvm - 1 - vmq[t], 62)
                    w[1] = nn if w[1] is None else min(w[1], nn)
                else:
                    raise RuntimeError(f"unknown tag {t} at {seg} {i} {op.text}")
            if op.kind == 'ds':
                dsq[op.tag] = nds
                nds += 1
            elif op.kind == 'vm':
                vmq[op.tag] = nvm
                nvm += 1
        useful = set()
        nds = nvm = 0
        ds_done = vm_done = 0
        for seg, i, op in seq:
            w = waits.get((seg, i))
            if w:
                if w[0] is not None and nds - w[0] > ds_done:
                    ds_done = nds - w[0]
                    useful.add((seg, i, 0))
                if w[1] is not None and nvm - w[1] > vm_done:
                    vm_done = nvm - w[1]
                    useful.add((seg, i, 1))
                for t in op.needs:
                    if t == 'LGKM0':
                        assert ds_done == nds
                    elif t in dsq:
                        assert dsq[t] < ds_done, (seg, i, t)
                    else:
                        assert vmq[t] < vm_done, (seg, i, t)
            if op.kind == 'ds':
                nds += 1
            elif op.kind == 'vm':
                nvm += 1

        def emit(seg, ops):
            lines = []
            for i, op in enumerate(ops):
                w = waits.get((seg, i))
                if w:
                    parts = []
                    if w[1] is not None and (seg, i, 1) in useful:
                        parts.append(f"vmcnt({w[1]})")
                    if w[0] is not None and ((seg, i, 0) in useful or 'LGKM0' in op.needs):
                        parts.append(f"lgkmcnt({w[0]})")
                    if parts:
                        lines.append("    s_waitcnt " + " ".join(parts))
                if op.kind == 'label':
                    lines.append(op.text)
                else:
                    lines.append("    " + op.text)
            return lines
        lines = emit('f1', fixed1)
        lines.append("    .p2align 3" if False else "")
        lines += emit('body', bodies[0]) + emit('f2', fixed2)
        return lines


HEADER = """; Kernarg layout for this problem (40 bytes, ptrs only, base s[0:1]):
; @launch grid=(256,1,1) block=(256,1,1) lds=163840
.amdgcn_target "amdgcn-amd-amdhsa--gfx950"
.text
.globl standalone__dilated_atrous__vision_kernel
.p2align 8
.type standalone__dilated_atrous__vision_kernel,@function
standalone__dilated_atrous__vision_kernel:
"""

FOOTER = """.section .rodata,"a"
.p2align 6
.amdhsa_kernel standalone__dilated_atrous__vision_kernel
  .amdhsa_next_free_vgpr 512
  .amdhsa_next_free_sgpr 64
  .amdhsa_accum_offset 256
  .amdhsa_group_segment_fixed_size 0
  .amdhsa_kernarg_size 40
  .amdhsa_user_sgpr_count 2
  .amdhsa_user_sgpr_kernarg_segment_ptr 1
  .amdhsa_system_sgpr_workgroup_id_x 1
.end_amdhsa_kernel
"""


def main():
    ap = argparse.ArgumentParser()
    ap.add_argument('-o', default='-')
    ap.add_argument('--stamps', action='store_true')
    ap.add_argument('--dbg', action='store_true')
    ap.add_argument('--nt-in', action='store_true', dest='nt_in')
    ap.add_argument('--store-mod', default='', dest='store_mod')
    args = ap.parse_args()
    if args.store_mod:
        args.store_mod = ' ' + args.store_mod.replace('+', ' ')
    g = Gen(args)
    lines = g.build()
    txt = HEADER + "\n".join(l for l in lines if l) + "\n" + FOOTER
    if args.o == '-':
        sys.stdout.write(txt)
    else:
        open(args.o, 'w').write(txt)


if __name__ == '__main__':
    main()
```
